```python
import torch

def _softmax(x, axis=-1):
    return torch.softmax(x, dim=axis)
def _gelu(x):
    return torch.nn.functional.gelu(x, approximate="tanh")
def _silu(x):
    return torch.nn.functional.silu(x)
def _sigmoid(x):
    return torch.sigmoid(x)
def _layernorm(x, axis=-1, eps=1e-5):
    m = x.mean(dim=axis, keepdim=True)
    v = x.var(dim=axis, keepdim=True, unbiased=False)
    return (x - m) / torch.sqrt(v + eps)
def _scatter_add(tgt, idx, src, axis=0):
    return tgt.clone().index_add_(axis, idx, src)
def _segment_sum(src, seg, n):
    out = torch.zeros((n,) + src.shape[1:], dtype=src.dtype)
    return out.index_add_(0, seg, src)
def _pad(x, pw):
    flat = tuple(v for pair in reversed(pw) for v in pair)
    return torch.nn.functional.pad(x, flat)

kernel_name = 'gated_mix__mha_block_cached__glu_gated_geglu__decode'

def setup_inputs():

    _w = (lambda a: (lambda t: t.to(torch.bfloat16) if t.is_floating_point() else t)(torch.as_tensor(a)))
    def _A_setup():
        B, Sq, D = 4, 1, 640
        H, Sk, Dh = 32, 8192, 192
        return {
            "x": _w((lambda *s: torch.randn(*s, dtype=torch.bfloat16) * 0.05)(B, Sq, D)),
            "k_cache": _w((lambda *s: torch.randn(*s, dtype=torch.bfloat16) * 3.2)(B, H, Sk, Dh)),
            "v_cache": _w((lambda *s: torch.randn(*s, dtype=torch.bfloat16) * 0.05)(B, H, Sk, Dh)),
            "wq": _w((lambda *s: torch.randn(*s, dtype=torch.bfloat16) * 3.2)(D, H * Dh) * (D ** -0.5)),
            "wo": _w((lambda *s: torch.randn(*s, dtype=torch.bfloat16) * 0.05)(H * Dh, D) * ((H * Dh) ** -0.5)),
        }
    _A_in = _A_setup()

    def _B_setup():
        B, S, Dm, Df = 4, 1, 640, 1536
        return {
            "x": _w((lambda *s: torch.randn(*s, dtype=torch.bfloat16) * 0.05)(B, S, Dm)),
            "w_gate": _w((lambda *s: torch.randn(*s, dtype=torch.bfloat16) * 0.2)(Dm, Df) * (Dm ** -0.5)),
            "w_up": _w((lambda *s: torch.randn(*s, dtype=torch.bfloat16) * 0.2)(Dm, Df) * (Dm ** -0.5)),
            "w_down": _w((lambda *s: torch.randn(*s, dtype=torch.bfloat16) * 0.2)(Df, Dm) * (Df ** -0.5)),
        }
    _B_in = _B_setup()

    return {
        "A_x": _A_in["x"],
        "A_k_cache": _A_in["k_cache"],
        "A_v_cache": _A_in["v_cache"],
        "A_wq": _A_in["wq"],
        "A_wo": _A_in["wo"],
        "B_x": _B_in["x"],
        "B_w_gate": _B_in["w_gate"],
        "B_w_up": _B_in["w_up"],
        "B_w_down": _B_in["w_down"],
        "gate_w": _w((lambda *s: torch.randn(*s, dtype=torch.bfloat16) * 0.05)(640) * 16.0),
    }

def reference(A_x, A_k_cache, A_v_cache, A_wq, A_wo, B_x, B_w_gate, B_w_up, B_w_down, gate_w):
    def _A_ref(x, k_cache, v_cache, wq, wo):
        B, Sq, D = x.shape
        H, Dh = 32, 192
        q = (lambda x, *d: x.permute(*d))((x @ wq).reshape(B, Sq, H, Dh), 0, 2, 1, 3)
        scores = torch.einsum("bhqd,bhkd->bhqk", q, k_cache) * (Dh ** -0.5)
        p = _softmax(scores, axis=-1)
        o = torch.einsum("bhqk,bhkd->bhqd", p, v_cache)
        return (lambda x, *d: x.permute(*d))(o, 0, 2, 1, 3).reshape(B, Sq, H * Dh) @ wo

    def _B_ref(x, w_gate, w_up, w_down):
        g = torch.einsum("bsd,df->bsf", x, w_gate)
        u = torch.einsum("bsd,df->bsf", x, w_up)
        h = _gelu(g) * u
        return torch.einsum("bsf,fd->bsd", h, w_down)

    x = A_x
    g = _sigmoid((x * gate_w).sum(-1, keepdims=True))
    a = _A_ref(x, A_k_cache, A_v_cache, A_wq, A_wo)
    b = _B_ref(x, B_w_gate, B_w_up, B_w_down)
    return g * a + (1 - g) * b
```

```python
import sys, argparse

KNAME = "gated_mix__mha_block_cached__glu_gated_geglu__decode"

HEADER = """; Kernarg layout for this problem (104 bytes, ptrs only, base s[0:1]):
"""

class A:
    def __init__(self):
        self.l = []
    def __call__(self, s):
        self.l.append("    " + s)
    def label(self, s):
        self.l.append(s + ":")
    def c(self, s):
        self.l.append("    ; " + s)
    def raw(self, s):
        self.l.append(s)
    def text(self):
        return "\n".join(self.l) + "\n"

def vr(b, n=1):
    return f"v{b}" if n == 1 else f"v[{b}:{b+n-1}]"
def sr(b, n=1):
    return f"s{b}" if n == 1 else f"s[{b}:{b+n-1}]"

WS_O = 0
WS_ML = 0x40000
WS_PART = 0x50000
WS_SIZE = 0x100000

def wave_reduce24(a, acc, tmpbase=None):
    a("s_nop 1")
    for i in range(12):
        a(f"v_permlane32_swap_b32 v{acc+2*i}, v{acc+2*i+1}")
    a("s_nop 1")
    for i in range(12):
        a(f"v_add_f32 v{acc+i*2}, v{acc+2*i}, v{acc+2*i+1}")
    a("s_nop 1")
    for i in range(6):
        a(f"v_permlane16_swap_b32 v{acc+4*i}, v{acc+4*i+2}")
    a("s_nop 1")
    for i in range(6):
        a(f"v_add_f32 v{acc+4*i}, v{acc+4*i}, v{acc+4*i+2}")
    a("s_nop 1")
    for i in range(6):
        a(f"v_add_f32_dpp v{acc+4*i}, v{acc+4*i}, v{acc+4*i} row_ror:8 row_mask:0xf bank_mask:0xf")
    return [acc+4*i for i in range(6)]

def gen_attn(opt):
    NW = 8
    R = opt.R
    BT = opt.BT
    NT = opt.nt
    ntf = " nt" if NT else ""
    keys_per_wg = 4096
    keys_per_wave = keys_per_wg // NW
    blk_keys = BT * 8
    NB = keys_per_wave // blk_keys
    a = A()
    name = "attn_kernel"
    a.raw(f".globl {name}\n.p2align 8\n.type {name},@function\n{name}:")
    v_tid = 0
    v_lane = 1; v_c = 2; v_r = 3
    v_off = 4
    v_m = 5; v_l = 6; v_mc = 7; v_t0 = 8; v_t1 = 9; v_t2 = 10; v_t3 = 11
    v_sa = [12, 13, 14]; v_sb = [15, 16, 17]
    v_p1 = [18, 19]
    v_q = 20
    v_s = 32
    v_acc = 48
    v_ring = 72
    nv = v_ring + 4 * R
    assert BT <= 16
    s_wg = 2
    S_X, S_K, S_V, S_WQ = 4, 6, 8, 10
    a(f"s_cmp_ge_u32 s2, {256 + 32}")
    a("s_cbranch_scc1 L_attn_end")
    a("s_load_dwordx8 s[4:11], s[0:1], 0")
    a("s_load_dwordx4 s[12:15], s[0:1], 48")
    a("s_load_dwordx2 s[16:17], s[0:1], 96")
    a("v_and_b32 v1, 63, v0")
    a("v_and_b32 v2, 7, v0")
    a("v_bfe_u32 v3, v0, 3, 3")
    a("v_lshrrev_b32 v8, 6, v0")
    a("s_nop 0")
    a("v_readfirstlane_b32 s18, v8")
    a("s_waitcnt lgkmcnt(0)")
    a("s_cmp_ge_u32 s2, 256")
    a("s_cbranch_scc1 L_ffn_setup")
    a("s_and_b32 s19, s2, 31")
    a("s_lshr_b32 s20, s2, 5")
    a("s_lshr_b32 s21, s20, 1")
    a("s_and_b32 s22, s20, 1")
    a("s_mul_i32 s23, s19, 384")
    a("s_add_u32 s24, s10, s23")
    a("s_addc_u32 s25, s11, 0")
    a("s_mov_b32 s28, 12288")
    a("s_mov_b32 s26, 7864320")
    a("s_sub_u32 s26, s26, s23")
    a("s_branch L_setup_done")
    a.label("L_ffn_setup")
    a("s_sub_u32 s20, s2, 256")
    a("s_and_b32 s19, s20, 7")
    a("s_lshr_b32 s21, s20, 3")
    a("s_mov_b32 s22, 0")
    a("s_mul_i32 s23, s19, 384")
    a("s_add_u32 s24, s12, s23")
    a("s_addc_u32 s25, s13, 0")
    a("s_mov_b32 s28, 3072")
    a("s_mov_b32 s26, 1966080")
    a("s_sub_u32 s26, s26, s23")
    a.label("L_setup_done")
    a("s_mov_b32 s27, 0x20000")
    a("s_mul_i32 s29, s21, 1280")
    a("s_add_u32 s32, s4, s29")
    a("s_addc_u32 s33, s5, 0")
    a("s_mov_b32 s34, 1280")
    a("s_mov_b32 s35, 0x20000")
    a("s_lshl_b32 s29, s21, 5")
    a("s_add_u32 s29, s29, s19")
    a("s_mul_i32 s30, s29, 3145728")
    a(f"s_mul_i32 s31, s22, {keys_per_wg*384}")
    a("s_add_u32 s30, s30, s31")
    a(f"s_mul_i32 s31, s18, {keys_per_wave*384}")
    a("s_add_u32 s30, s30, s31")
    a("s_add_u32 s36, s6, s30")
    a("s_addc_u32 s37, s7, 0")
    a(f"s_mov_b32 s38, {keys_per_wave*384}")
    a("s_mov_b32 s39, 0x20000")
    a("s_add_u32 s40, s8, s30")
    a("s_addc_u32 s41, s9, 0")
    a(f"s_mov_b32 s42, {keys_per_wave*384}")
    a("s_mov_b32 s43, 0x20000")
    a("v_mul_u32_u24 v4, 384, v3")
    a("v_lshl_add_u32 v4, v2, 4, v4")
    def proj():
        a("s_lshl_b32 s29, s18, 3")
        a(f"v_add_u32 v8, s29, v3")
        a("v_lshlrev_b32 v9, 1, v8")
        for i in range(10):
            a(f"buffer_load_ushort v{v_s+i}, v9, s[32:35], 0 offen offset:{128*i}")
        a("v_mul_lo_u32 v10, v8, s28")
        a("v_lshl_add_u32 v10, v2, 4, v10")
        a("s_lshl_b32 s30, s28, 6")
        for i in range(24):
            a(f"v_mov_b32 v{v_acc+i}, 0")
        RP = min(R, 30)
        nload = 30
        def issue(n):
            i, j = divmod(n, 3)
            if j == 0:
                a(f"s_mul_i32 s31, s30, {i}")
            a(f"buffer_load_dwordx4 {vr(v_ring+4*(n%RP),4)}, v10, s[24:27], s31 offen offset:{128*j}")
        for n in range(min(RP, nload)):
            issue(n)
        for t in range(10):
            issued = min(nload, 3*t + RP)
            a(f"s_waitcnt vmcnt({issued - (3*t+3)})")
            a(f"v_lshlrev_b32 v{v_p1[0]}, 16, v{v_s+t}")
            for j in range(3):
                sl = v_ring + 4*((3*t+j) % RP)
                for w in range(4):
                    a(f"v_dot2c_f32_bf16 v{v_acc+8*j+2*w}, v{sl+w}, v{v_s+t}")
                    a(f"v_dot2c_f32_bf16 v{v_acc+8*j+2*w+1}, v{sl+w}, v{v_p1[0]}")
            for j in range(3):
                n = 3*t + RP + j
                if n < nload:
                    issue(n)
    def wg_merge_plain(dst_t):
        a("s_nop 2")
        regs = wave_reduce24(a, v_acc)
        a("v_bfe_u32 v8, v1, 5, 1")
        a("v_bfe_u32 v9, v1, 4, 1")
        a("v_lshl_add_u32 v8, v9, 1, v8")
        a("v_lshl_add_u32 v8, v2, 3, v8")
        a("v_lshlrev_b32 v8, 2, v8")
        a("s_mul_i32 s29, s18, 768")
        a("v_add_u32 v8, s29, v8")
        a("s_barrier")
        for i in range(6):
            off = ((i >> 1) * 64 + 4 * (i & 1)) * 4
            a(f"ds_write_b32 v8, v{regs[i]} offset:{off}")
        a("s_waitcnt lgkmcnt(0)")
        a("s_barrier")
        a("v_lshlrev_b32 v8, 2, v0")
        a("v_min_u32 v8, 764, v8")
        for w in range(8):
            a(f"ds_read_b32 v{v_ring+w}, v8 offset:{768*w}")
        a("s_waitcnt lgkmcnt(0)")
        a(f"v_add_f32 v{dst_t}, v{v_ring}, v{v_ring+1}")
        for w in range(2, 8):
            a(f"v_add_f32 v{dst_t}, v{dst_t}, v{v_ring+w}")
    proj()
    wg_merge_plain(v_m)
    a("s_cmp_ge_u32 s2, 256")
    a("s_cbranch_scc1 L_ffn")
    a(f"v_cvt_pk_bf16_f32 v8, v{v_m}, v{v_m}")
    a("v_lshlrev_b32 v9, 1, v0")
    a("v_cmp_gt_u32 vcc, 192, v0")
    a("s_and_saveexec_b64 s[44:45], vcc")
    a("ds_write_b16 v9, v8 offset:8192")
    a("s_mov_b64 exec, s[44:45]")
    a("s_waitcnt lgkmcnt(0)")
    a("s_barrier")
    a("v_lshlrev_b32 v8, 4, v2")
    for j in range(3):
        a(f"ds_read_b128 {vr(v_q+4*j,4)}, v8 offset:{8192+128*j}")
    a(f"v_mov_b32 v{v_m}, 0xf149f2ca")
    a(f"v_mov_b32 v{v_l}, 0")
    for i in range(24):
        a(f"v_mov_b32 v{v_acc+i}, 0")
    a("s_mov_b32 s46, 0x3dd53b94")
    import struct, math
    cval = (192 ** -0.5) * math.log2(math.e)
    cbits = struct.unpack("<I", struct.pack("<f", cval))[0]
    a.l[-1] = f"    s_mov_b32 s46, {cbits:#x}"
    NL = 6 * BT
    assert NL % R == 0
    def issue(n):
        nxt = n >= NL
        nn = n % NL
        isV = nn >= 3 * BT
        tn = nn % (3 * BT)
        t, j = divmod(tn, 3)
        srd = "s[40:43]" if isV else "s[36:39]"
        if j == 0:
            base = "s49" if nxt else "s47"
            a(f"s_add_u32 s48, {base}, {t*3072}")
        a(f"buffer_load_dwordx4 {vr(v_ring+4*(n%R),4)}, v4, {srd}, s48 offen offset:{128*j}{ntf}")
    a("s_mov_b32 s47, 0")
    a(f"s_mov_b32 s49, {BT*3072}")
    assert R % 3 == 0
    for n in range(R):
        issue(n)
    a("s_mov_b32 s50, 0")
    a("s_waitcnt lgkmcnt(0)")
    a.label("L_loop")
    def red_steps(setr, dst):
        sa, sb, sc = setr
        return [
            f"v_add_f32 v{dst}, v{sa}, v{sb}",
            f"v_add_f32 v{dst}, v{dst}, v{sc}",
            f"v_add_f32_dpp v{dst}, v{dst}, v{dst} quad_perm:[1,0,3,2] row_mask:0xf bank_mask:0xf",
            f"v_add_f32_dpp v{dst}, v{dst}, v{dst} quad_perm:[2,3,0,1] row_mask:0xf bank_mask:0xf",
            f"v_add_f32_dpp v{dst}, v{dst}, v{dst} row_half_mirror row_mask:0xf bank_mask:0xf",
        ]
    pending = []
    for t in range(BT):
        setr = v_sa if t % 2 == 0 else v_sb
        a(f"s_waitcnt vmcnt({R-3})")
        dots = []
        for w in range(4):
            for j in range(3):
                sl = v_ring + 4*((3*t+j) % R)
                src2 = "0" if w == 0 else f"v{setr[j]}"
                dots.append(f"v_dot2_f32_bf16 v{setr[j]}, v{sl+w}, v{v_q+4*j+w}, {src2}")
        k = 0
        for i, d in enumerate(dots):
            a(d)
            if pending and i % 2 == 1 and i >= 1:
                a(pending.pop(0))
        assert not pending
        for j in range(3):
            issue(3*t + R + j)
        pending = red_steps(setr, v_s + t)
    for st in pending:
        a(st)
        a("s_nop 1")
    pending = []
    a(f"v_max3_f32 v8, v{v_s}, v{v_s+1}, v{v_m}")
    i = 2
    while i < BT:
        if i + 1 < BT:
            a(f"v_max3_f32 v8, v{v_s+i}, v{v_s+i+1}, v8")
            i += 2
        else:
            a(f"v_max_f32 v8, v{v_s+i}, v8")
            i += 1
    a(f"v_sub_f32 v9, v{v_m}, v8")
    a(f"v_mul_f32 v9, s46, v9")
    a("v_exp_f32 v9, v9")
    a(f"v_mov_b32 v{v_m}, v8")
    a(f"v_mul_f32 v{v_mc}, s46, v8")
    for t in range(BT):
        a(f"v_fma_f32 v{v_s+t}, v{v_s+t}, s46, -v{v_mc}")
    for t in range(BT):
        a(f"v_exp_f32 v{v_s+t}, v{v_s+t}")
    a(f"v_mul_f32 v{v_l}, v{v_l}, v9")
    for i in range(12):
        a(f"v_pk_mul_f32 {vr(v_acc+2*i,2)}, {vr(v_acc+2*i,2)}, v[8:9] op_sel:[0,1] op_sel_hi:[1,1]")
    for t in range(BT):
        a(f"v_add_f32 v{v_l}, v{v_l}, v{v_s+t}")
    for t in range(BT):
        a(f"v_cvt_pk_bf16_f32 v{v_s+t}, v{v_s+t}, 0")
    for t in range(BT):
        tt = BT + t
        a(f"s_waitcnt vmcnt({R-3})")
        p1 = v_p1[t % 2]
        a(f"v_lshlrev_b32 v{p1}, 16, v{v_s+t}")
        for j in range(3):
            sl = v_ring + 4*((3*tt+j) % R)
            for w in range(4):
                a(f"v_dot2c_f32_bf16 v{v_acc+8*j+2*w}, v{sl+w}, v{v_s+t}")
        for j in range(3):
            sl = v_ring + 4*((3*tt+j) % R)
            for w in range(4):
                a(f"v_dot2c_f32_bf16 v{v_acc+8*j+2*w+1}, v{sl+w}, v{p1}")
        for j in range(3):
            issue(3*tt + R + j)
    a("s_mov_b32 s47, s49")
    a(f"s_add_u32 s49, s49, {BT*3072}")
    a("s_add_u32 s50, s50, 1")
    a(f"s_cmp_lt_u32 s50, {NB}")
    a("s_cbranch_scc1 L_loop")
    a("s_waitcnt vmcnt(0)")
    a(f"v_mov_b32 v8, v{v_m}")
    a("s_nop 1")
    a(f"v_max_f32_dpp v8, v8, v8 row_ror:8 row_mask:0xf bank_mask:0xf")
    a("v_mov_b32 v9, v8")
    a("s_nop 1")
    a("v_permlane16_swap_b32 v8, v9")
    a("s_nop 1")
    a("v_max_f32 v8, v8, v9")
    a("v_mov_b32 v9, v8")
    a("s_nop 1")
    a("v_permlane32_swap_b32 v8, v9")
    a("s_nop 1")
    a("v_max_f32 v8, v8, v9")
    a(f"v_sub_f32 v9, v{v_m}, v8")
    a("v_mul_f32 v9, s46, v9")
    a("v_exp_f32 v9, v9")
    a("s_nop 0")
    a(f"v_mul_f32 v{v_l}, v{v_l}, v9")
    for i in range(24):
        a(f"v_mul_f32 v{v_acc+i}, v{v_acc+i}, v9")
    a("s_nop 1")
    a(f"v_add_f32_dpp v{v_l}, v{v_l}, v{v_l} row_ror:8 row_mask:0xf bank_mask:0xf")
    a(f"v_mov_b32 v9, v{v_l}")
    a("s_nop 1")
    a(f"v_permlane16_swap_b32 v{v_l}, v9")
    a("s_nop 1")
    a(f"v_add_f32 v{v_l}, v{v_l}, v9")
    a(f"v_mov_b32 v9, v{v_l}")
    a("s_nop 1")
    a(f"v_permlane32_swap_b32 v{v_l}, v9")
    a("s_nop 1")
    a(f"v_add_f32 v{v_l}, v{v_l}, v9")
    a(f"v_mov_b32 v{v_m}, v8")
    regs = wave_reduce24(a, v_acc)
    a("v_bfe_u32 v8, v1, 5, 1")
    a("v_bfe_u32 v9, v1, 4, 1")
    a("v_lshl_add_u32 v8, v9, 1, v8")
    a("v_lshl_add_u32 v8, v2, 3, v8")
    a("v_lshlrev_b32 v8, 2, v8")
    a("s_mul_i32 s29, s18, 768")
    a("v_add_u32 v8, s29, v8")
    for i in range(6):
        off = ((i >> 1) * 64 + 4 * (i & 1)) * 4
        a(f"ds_write_b32 v8, v{regs[i]} offset:{off}")
    a("s_lshl_b32 s29, s18, 3")
    a("v_mov_b32 v9, s29")
    a(f"ds_write_b64 v9, v[{v_m}:{v_l}] offset:6144") if False else None
    a(f"v_mov_b32 v10, v{v_m}")
    a(f"v_mov_b32 v11, v{v_l}")
    a("ds_write_b64 v9, v[10:11] offset:6144")
    a("s_waitcnt lgkmcnt(0)")
    a("s_barrier")
    a("v_mov_b32 v9, 0")
    for w in range(4):
        a(f"ds_read_b128 {vr(v_ring+16+4*w,4)}, v9 offset:{6144+16*w}")
    a("v_lshlrev_b32 v8, 2, v0")
    a("v_min_u32 v8, 764, v8")
    for w in range(8):
        a(f"ds_read_b32 v{v_ring+w}, v8 offset:{768*w}")
    a("s_waitcnt lgkmcnt(0)")
    ml = v_ring + 16
    a(f"v_max3_f32 v10, v{ml}, v{ml+2}, v{ml+4}")
    a(f"v_max3_f32 v10, v10, v{ml+6}, v{ml+8}")
    a(f"v_max3_f32 v10, v10, v{ml+10}, v{ml+12}")
    a(f"v_max_f32 v10, v10, v{ml+14}")
    for w in range(8):
        a(f"v_sub_f32 v{ml+2*w}, v{ml+2*w}, v10")
        a(f"v_mul_f32 v{ml+2*w}, s46, v{ml+2*w}")
        a(f"v_exp_f32 v{ml+2*w}, v{ml+2*w}")
    a("s_nop 0")
    a(f"v_mul_f32 v11, v{ml}, v{ml+1}")
    a(f"v_mul_f32 v12, v{ml}, v{v_ring}")
    for w in range(1, 8):
        a(f"v_fmac_f32 v11, v{ml+2*w}, v{ml+2*w+1}")
        a(f"v_fmac_f32 v12, v{ml+2*w}, v{v_ring+w}")
    a("s_lshl_b32 s29, s19, 2")
    a("s_add_u32 s29, s29, s21")
    a("s_lshl_b32 s29, s29, 1")
    a("s_add_u32 s29, s29, s22")
    a("s_mov_b32 s52, s16")
    a("s_mov_b32 s53, s17")
    a(f"s_mov_b32 s54, {WS_SIZE}")
    a("s_mov_b32 s55, 0x20000")
    a("s_mul_i32 s30, s29, 768")
    a("v_lshlrev_b32 v8, 2, v0")
    a("v_cmp_gt_u32 vcc, 192, v0")
    a("s_and_saveexec_b64 s[44:45], vcc")
    a(f"buffer_store_dword v12, v8, s[52:55], s30 offen offset:{WS_O}")
    a("s_lshl_b32 s30, s29, 3")
    a(f"s_add_u32 s30, s30, {WS_ML}")
    a("v_cmp_eq_u32 vcc, 0, v0")
    a("s_and_b64 exec, exec, vcc")
    a("v_mov_b32 v8, 0")
    a(f"buffer_store_dwordx2 v[10:11], v8, s[52:55], s30 offen")
    a("s_endpgm")
    a.label("L_ffn")
    a(f"v_mov_b32 v{v_l}, v{v_m}")
    a("s_mul_i32 s23, s19, 384")
    a("s_add_u32 s24, s14, s23")
    a("s_addc_u32 s25, s15, 0")
    proj()
    wg_merge_plain(v_m)
    a(f"v_cvt_pk_bf16_f32 v8, v{v_l}, v{v_m}")
    a("v_lshlrev_b32 v9, 16, v8")
    a("v_and_b32 v10, 0xffff0000, v8")
    k1 = -2.0 * math.log2(math.e) * math.sqrt(2.0 / math.pi)
    def fbits(x): return struct.unpack("<I", struct.pack("<f", x))[0]
    a("v_mul_f32 v11, v9, v9")
    a(f"v_mov_b32 v12, {fbits(0.044715):#x}")
    a("v_fma_f32 v11, v11, v12, 1.0")
    a("v_mul_f32 v11, v11, v9")
    a(f"v_mul_f32 v11, {fbits(k1):#x}, v11")
    a("v_exp_f32 v11, v11")
    a("s_nop 0")
    a("v_add_f32 v11, 1.0, v11")
    a("v_rcp_f32 v11, v11")
    a("s_nop 0")
    a("v_mul_f32 v11, v11, v9")
    a("v_cvt_pk_bf16_f32 v11, v11, v11")
    a("v_and_b32 v11, 0xffff0000, v11")
    a("v_mul_f32 v12, v11, v10")
    a("s_add_u32 s29, s19, 32")
    a("s_lshl_b32 s29, s29, 2")
    a("s_add_u32 s29, s29, s21")
    a("s_lshl_b32 s29, s29, 1")
    a("s_mov_b32 s52, s16")
    a("s_mov_b32 s53, s17")
    a(f"s_mov_b32 s54, {WS_SIZE}")
    a("s_mov_b32 s55, 0x20000")
    a("s_mul_i32 s30, s29, 768")
    a("v_lshlrev_b32 v8, 2, v0")
    a("v_cmp_gt_u32 vcc, 192, v0")
    a("s_and_saveexec_b64 s[44:45], vcc")
    a(f"buffer_store_dword v12, v8, s[52:55], s30 offen offset:{WS_O}")
    a.label("L_attn_end")
    a("s_endpgm")
    return a, name, nv, 64

def gen_final(opt):
    import struct, math
    a = A()
    name = "final_kernel"
    a.raw(f".globl {name}\n.p2align 8\n.type {name},@function\n{name}:")
    a("s_cmp_ge_u32 s2, 200")
    a("s_cbranch_scc1 L_fin_end")
    a("s_load_dwordx2 s[4:5], s[0:1], 0")
    a("s_load_dwordx2 s[6:7], s[0:1], 32")
    a("s_load_dwordx4 s[8:11], s[0:1], 64")
    a("s_load_dwordx4 s[12:15], s[0:1], 80")
    a("s_load_dwordx2 s[16:17], s[0:1], 96")
    a("v_and_b32 v1, 63, v0")
    a("v_lshrrev_b32 v2, 6, v0")
    a("s_nop 0")
    a("v_readfirstlane_b32 s18, v2")
    a(f"s_mul_hi_u32 s19, s2, {(2**32 + 4)//5}")
    a("s_mul_i32 s20, s19, 5")
    a("s_sub_u32 s20, s2, s20")
    a("s_waitcnt lgkmcnt(0)")
    a("s_mov_b32 s52, s16")
    a("s_mov_b32 s53, s17")
    a(f"s_mov_b32 s54, {WS_SIZE}")
    a("s_mov_b32 s55, 0x20000")
    a("s_cmp_ge_u32 s19, 32")
    a("s_cselect_b32 s24, s8, s6")
    a("s_cselect_b32 s25, s9, s7")
    a("s_and_b32 s21, s19, 31")
    a("s_mul_i32 s21, s21, 245760")
    a("s_lshl_b32 s22, s20, 8")
    a("s_add_u32 s21, s21, s22")
    a("s_add_u32 s24, s24, s21")
    a("s_addc_u32 s25, s25, 0")
    a("s_mov_b32 s26, 245760")
    a("s_sub_u32 s26, s26, s22")
    a("s_mov_b32 s27, 0x20000")
    a("v_lshrrev_b32 v3, 4, v1")
    a("s_lshl_b32 s21, s18, 2")
    a("v_add_u32 v3, s21, v3")
    a("v_mul_u32_u24 v4, 1280, v3")
    a("v_and_b32 v5, 15, v1")
    a("v_lshl_add_u32 v4, v5, 4, v4")
    v_w = 64
    for s in range(12):
        a(f"s_mov_b32 s21, {s*16*1280}")
        a(f"buffer_load_dwordx4 {vr(v_w+4*s,4)}, v4, s[24:27], s21 offen")
    a("s_mul_i32 s21, s18, 1280")
    a("s_add_u32 s32, s4, s21")
    a("s_addc_u32 s33, s5, 0")
    a("s_mov_b32 s34, 1280")
    a("s_mov_b32 s35, 0x20000")
    a("s_mov_b32 s36, s10")
    a("s_mov_b32 s37, s11")
    a("s_mov_b32 s38, 1280")
    a("s_mov_b32 s39, 0x20000")
    a("v_lshlrev_b32 v6, 2, v1")
    for i in range(5):
        a(f"buffer_load_dword v{8+i}, v6, s[32:35], 0 offen offset:{256*i}")
        a(f"buffer_load_dword v{16+i}, v6, s[36:39], 0 offen offset:{256*i}")
    a("s_lshl_b32 s21, s19, 2")
    a("s_add_u32 s21, s21, s18")
    a("s_lshl_b32 s21, s21, 1")
    a("s_mul_i32 s22, s21, 768")
    for i in range(3):
        a(f"buffer_load_dword v{24+i}, v6, s[52:55], s22 offen offset:{256*i}")
        a(f"buffer_load_dword v{28+i}, v6, s[52:55], s22 offen offset:{768+256*i}")
    a("s_lshl_b32 s22, s21, 3")
    a(f"s_add_u32 s22, s22, {WS_ML}")
    a("v_mov_b32 v7, 0")
    a("buffer_load_dwordx4 v[32:35], v7, s[52:55], s22 offen")
    a("s_waitcnt vmcnt(0)")
    a("v_mov_b32 v40, 0")
    for i in range(5):
        a(f"v_lshlrev_b32 v41, 16, v{8+i}")
        a(f"v_lshlrev_b32 v42, 16, v{16+i}")
        a(f"v_and_b32 v43, 0xffff0000, v{8+i}")
        a(f"v_and_b32 v44, 0xffff0000, v{16+i}")
        a("v_mul_f32 v41, v41, v42")
        a("v_mul_f32 v43, v43, v44")
        a("v_cvt_pk_bf16_f32 v41, v41, v43")
        a("v_lshlrev_b32 v42, 16, v41")
        a("v_and_b32 v43, 0xffff0000, v41")
        a("v_add_f32 v40, v40, v42")
        a("v_add_f32 v40, v40, v43")
    for ctl in ["quad_perm:[1,0,3,2]", "quad_perm:[2,3,0,1]", "row_half_mirror", "row_mirror"]:
        a("s_nop 1")
        a(f"v_add_f32_dpp v40, v40, v40 {ctl} row_mask:0xf bank_mask:0xf")
    for sw in ["16", "32"]:
        a("v_mov_b32 v41, v40")
        a("s_nop 1")
        a(f"v_permlane{sw}_swap_b32 v40, v41")
        a("s_nop 1")
        a("v_add_f32 v40, v40, v41")
    a("v_cvt_pk_bf16_f32 v40, v40, v40")
    a("v_and_b32 v40, 0xffff0000, v40")
    def fbits(x): return struct.unpack("<I", struct.pack("<f", x))[0]
    a(f"v_mul_f32 v41, {fbits(-math.log2(math.e)):#x}, v40")
    a("v_exp_f32 v41, v41")
    a("s_nop 0")
    a("v_add_f32 v41, 1.0, v41")
    a("v_rcp_f32 v41, v41")
    a("s_nop 0")
    a("v_cvt_pk_bf16_f32 v41, v41, v41")
    a("v_and_b32 v41, 0xffff0000, v41")
    a("v_sub_f32 v42, 1.0, v41")
    a("v_cvt_pk_bf16_f32 v42, v42, v42")
    a("v_and_b32 v42, 0xffff0000, v42")
    a("s_cmp_ge_u32 s19, 32")
    a("s_cbranch_scc1 L_fin_ffn")
    cval = (192 ** -0.5) * math.log2(math.e)
    a(f"s_mov_b32 s46, {fbits(cval):#x}")
    a("v_max_f32 v36, v32, v34")
    a("v_sub_f32 v32, v32, v36")
    a("v_sub_f32 v34, v34, v36")
    a("v_mul_f32 v32, s46, v32")
    a("v_mul_f32 v34, s46, v34")
    a("v_exp_f32 v32, v32")
    a("v_exp_f32 v34, v34")
    a("s_nop 0")
    a("v_mul_f32 v37, v32, v33")
    a("v_fmac_f32 v37, v34, v35")
    a("v_rcp_f32 v37, v37")
    a("s_nop 0")
    a("v_mul_f32 v32, v32, v37")
    a("v_mul_f32 v34, v34, v37")
    for i in range(3):
        a(f"v_mul_f32 v{24+i}, v{24+i}, v32")
        a(f"v_fmac_f32 v{24+i}, v{28+i}, v34")
    a("v_mov_b32 v42, v41")
    a.label("L_fin_ffn")
    a("v_lshlrev_b32 v6, 4, v1")
    a("s_lshl_b32 s21, s18, 2")
    a("v_add_u32 v6, s21, v6")
    for i in range(3):
        a(f"v_cvt_pk_bf16_f32 v{24+i}, v{24+i}, 0")
        a(f"ds_write_b32 v6, v{24+i} offset:{1024*i}")
    a("v_mov_b32 v7, s21")
    a("ds_write_b32 v7, v42 offset:4096")
    a("s_waitcnt lgkmcnt(0)")
    a("s_barrier")
    v_acc = 8
    for i in range(32):
        a(f"v_mov_b32 v{v_acc+i}, 0")
    a("v_lshlrev_b32 v6, 4, v3")
    for s in range(12):
        a(f"ds_read_b128 {vr(112+4*(s%2),4)}, v6 offset:{256*s}")
        a("s_waitcnt lgkmcnt(0)")
        av = 112 + 4*(s % 2)
        for b in range(4):
            a(f"v_lshlrev_b32 v{120+b}, 16, v{av+b}")
        for b in range(4):
            for w in range(4):
                a(f"v_dot2c_f32_bf16 v{v_acc+8*b+2*w}, v{v_w+4*s+w}, v{av+b}")
                a(f"v_dot2c_f32_bf16 v{v_acc+8*b+2*w+1}, v{v_w+4*s+w}, v{120+b}")
    a("s_nop 2")
    for i in range(16):
        a(f"v_permlane32_swap_b32 v{v_acc+2*i}, v{v_acc+2*i+1}")
    a("s_nop 1")
    for i in range(16):
        a(f"v_add_f32 v{v_acc+2*i}, v{v_acc+2*i}, v{v_acc+2*i+1}")
    a("s_nop 1")
    for i in range(8):
        a(f"v_permlane16_swap_b32 v{v_acc+4*i}, v{v_acc+4*i+2}")
    a("s_nop 1")
    for i in range(8):
        a(f"v_add_f32 v{v_acc+4*i}, v{v_acc+4*i}, v{v_acc+4*i+2}")
    a("v_bfe_u32 v6, v1, 5, 1")
    a("v_bfe_u32 v7, v1, 4, 1")
    a("v_lshl_add_u32 v6, v7, 1, v6")
    a("v_lshl_add_u32 v6, v5, 3, v6")
    a("v_lshlrev_b32 v6, 2, v6")
    a("s_lshl_b32 s21, s18, 11")
    a("v_add_u32 v6, s21, v6")
    for i in range(8):
        off = 8192 + (i >> 1) * 512 + 16 * (i & 1)
        a(f"ds_write_b32 v6, v{v_acc+4*i} offset:{off}")
    a("s_waitcnt lgkmcnt(0)")
    a("s_barrier")
    a("v_lshlrev_b32 v6, 2, v0")
    for k in range(2):
        for w in range(4):
            a(f"ds_read_b32 v{8+4*k+w}, v6 offset:{8192+2048*w+1024*k}")
    a("v_lshrrev_b32 v7, 7, v0")
    a("v_lshlrev_b32 v7, 2, v7")
    a("ds_read_b32 v16, v7 offset:4096")
    a("ds_read_b32 v17, v7 offset:4104")
    a("s_waitcnt lgkmcnt(0)")
    for k in range(2):
        a(f"v_add_f32 v{8+4*k}, v{8+4*k}, v{9+4*k}")
        a(f"v_add_f32 v{10+4*k}, v{10+4*k}, v{11+4*k}")
        a(f"v_add_f32 v{8+4*k}, v{8+4*k}, v{10+4*k}")
        a(f"v_mul_f32 v{8+4*k}, v{8+4*k}, v{16+k}")
    a("v_lshrrev_b32 v7, 7, v0")
    a("v_mul_u32_u24 v7, 2560, v7")
    a("v_and_b32 v6, 127, v0")
    a("v_lshl_add_u32 v7, v6, 2, v7")
    a("s_mul_i32 s21, s19, 10240")
    a("s_lshl_b32 s22, s20, 9")
    a("s_add_u32 s21, s21, s22")
    a(f"s_add_u32 s21, s21, {WS_PART}")
    a("buffer_store_dword v8, v7, s[52:55], s21 offen sc1")
    a("s_add_u32 s21, s21, 5120")
    a("buffer_store_dword v12, v7, s[52:55], s21 offen sc1")
    a("s_waitcnt vmcnt(0)")
    a("s_barrier")
    a("s_mov_b32 s56, s14")
    a("s_mov_b32 s57, s15")
    a("s_mov_b32 s58, 256")
    a("s_mov_b32 s59, 0x20000")
    a("v_cmp_eq_u32 vcc, 0, v0")
    a("s_and_saveexec_b64 s[44:45], vcc")
    a("s_cbranch_execz L_fin_skip")
    a("v_mov_b32 v20, 1")
    a("s_lshl_b32 s21, s20, 2")
    a("v_mov_b32 v21, s21")
    a("buffer_atomic_add v20, v21, s[56:59], 0 offen sc0")
    a("s_waitcnt vmcnt(0)")
    a("v_mov_b32 v21, 0")
    a("ds_write_b32 v21, v20 offset:4200")
    a("s_waitcnt lgkmcnt(0)")
    a.label("L_fin_skip")
    a("s_mov_b64 exec, s[44:45]")
    a("s_barrier")
    a("v_mov_b32 v21, 0")
    a("ds_read_b32 v20, v21 offset:4200")
    a("s_waitcnt lgkmcnt(0)")
    a("v_readfirstlane_b32 s21, v20")
    a("s_cmp_lg_u32 s21, 39")
    a("s_cbranch_scc1 L_fin_end")
    a("s_lshl_b32 s22, s20, 9")
    a(f"s_add_u32 s22, s22, {WS_PART}")
    for k in range(2):
        for hh in range(40):
            a(f"s_add_u32 s21, s22, {hh*10240 + k*5120}")
            a(f"buffer_load_dword v{24+40*k+hh}, v7, s[52:55], s21 offen sc1")
    a("s_waitcnt vmcnt(0)")
    for k in range(2):
        for hh in range(1, 40):
            a(f"v_add_f32 v{24+40*k}, v{24+40*k}, v{24+40*k+hh}")
    a("s_mov_b32 s60, s12")
    a("s_mov_b32 s61, s13")
    a("s_mov_b32 s62, 5120")
    a("s_mov_b32 s63, 0x20000")
    a("v_lshrrev_b32 v7, 1, v7")
    a("s_lshl_b32 s21, s20, 8")
    a("v_cvt_pk_bf16_f32 v24, v24, v24")
    a("v_cvt_pk_bf16_f32 v64, v64, v64")
    a("buffer_store_short v24, v7, s[60:63], s21 offen")
    a("s_add_u32 s21, s21, 2560")
    a("buffer_store_short v64, v7, s[60:63], s21 offen")
    a.label("L_fin_end")
    a("s_endpgm")
    return a, name, 128, 64

def kd(name, nv, ns):
    acc = (nv + 3) // 4 * 4
    return f""".amdhsa_kernel {name}
  .amdhsa_next_free_vgpr {nv}
  .amdhsa_next_free_sgpr {ns}
  .amdhsa_accum_offset {acc}
  .amdhsa_group_segment_fixed_size 0
  .amdhsa_kernarg_size 104
  .amdhsa_user_sgpr_count 2
  .amdhsa_user_sgpr_kernarg_segment_ptr 1
  .amdhsa_system_sgpr_workgroup_id_x 1
.end_amdhsa_kernel
"""

def main():
    p = argparse.ArgumentParser()
    p.add_argument("--R", type=int, default=12)
    p.add_argument("--BT", type=int, default=8)
    p.add_argument("--nt", type=int, default=0)
    p.add_argument("-o", default="cdna_kernels/" + KNAME + ".s")
    opt = p.parse_args()
    ka, n1, nv1, ns1 = gen_attn(opt)
    kf, n2, nv2, ns2 = gen_final(opt)
    out = HEADER
    out += f"; @launch kernel={n1} grid=(288,1,1) block=(512,1,1) lds=16384\n"
    out += f"; @launch kernel={n2} grid=(200,1,1) block=(256,1,1) lds=16384\n"
    out += '.amdgcn_target "amdgcn-amd-amdhsa--gfx950"\n.text\n'
    out += ka.text() + kf.text()
    out += '.section .rodata,"a"\n.p2align 6\n'
    out += kd(n1, nv1, ns1) + ".p2align 6\n" + kd(n2, nv2, ns2)
    open(opt.o, "w").write(out)
    print("wrote", opt.o, "vgprs", nv1, nv2)

main()
```
